```python
import torch

def _softmax(x, axis=-1):
    return torch.softmax(x, dim=axis)
def _gelu(x):
    return torch.nn.functional.gelu(x, approximate="tanh")
def _silu(x):
    return torch.nn.functional.silu(x)
def _sigmoid(x):
    return torch.sigmoid(x)
def _layernorm(x, axis=-1, eps=1e-5):
    m = x.mean(dim=axis, keepdim=True)
    v = x.var(dim=axis, keepdim=True, unbiased=False)
    return (x - m) / torch.sqrt(v + eps)
def _scatter_add(tgt, idx, src, axis=0):
    return tgt.clone().index_add_(axis, idx, src)
def _segment_sum(src, seg, n):
    out = torch.zeros((n,) + src.shape[1:], dtype=src.dtype)
    return out.index_add_(0, seg, src)
def _pad(x, pw):
    flat = tuple(v for pair in reversed(pw) for v in pair)
    return torch.nn.functional.pad(x, flat)

kernel_name = 'parallel_sum__ssm_conv_s4__glu_gated_glu__prompt'

def setup_inputs():

    _w = (lambda a: (lambda t: t.to(torch.bfloat16) if t.is_floating_point() else t)(torch.as_tensor(a)))
    def _A_setup():
        B, L, D, N = 1, 2048, 448, 256
        A_re = -(lambda _x: torch.exp(torch.as_tensor(_x)))((lambda *s: torch.randn(*s, dtype=torch.bfloat16) * 6.4)(D, N))
        A_im = torch.pi * (lambda *s: torch.randn(*s, dtype=torch.bfloat16) * 0.1)(D, N)
        B_re = (lambda *s: torch.randn(*s, dtype=torch.bfloat16) * 0.2)(D, N)
        B_im = (lambda *s: torch.randn(*s, dtype=torch.bfloat16) * 0.2)(D, N)
        C_re = (lambda *s: torch.randn(*s, dtype=torch.bfloat16) * 0.2)(D, N)
        C_im = (lambda *s: torch.randn(*s, dtype=torch.bfloat16) * 0.2)(D, N)
        log_dt = (lambda *s: torch.randn(*s, dtype=torch.bfloat16) * 0.1)(D) * 0.5 - 4.0
        Dskip = (lambda *s: torch.randn(*s, dtype=torch.bfloat16) * 0.1)(D)
        return {
            "u": _w((lambda *s: torch.randn(*s, dtype=torch.bfloat16) * 0.05)(B, L, D)),
            "A_re": _w(A_re),
            "A_im": _w(A_im),
            "B_re": _w(B_re),
            "B_im": _w(B_im),
            "C_re": _w(C_re),
            "C_im": _w(C_im),
            "log_dt": _w(log_dt),
            "Dskip": _w(Dskip),
        }
    _A_in = _A_setup()

    def _B_setup():
        B, S, D, F = 1, 2048, 448, 1792
        return {
            "x": _w((lambda *s: torch.randn(*s, dtype=torch.bfloat16) * 0.05)(B, S, D)),
            "w_gate": _w((lambda *s: torch.randn(*s, dtype=torch.bfloat16) * 0.05)(D, F)),
            "w_up": _w((lambda *s: torch.randn(*s, dtype=torch.bfloat16) * 0.05)(D, F)),
            "w_down": _w((lambda *s: torch.randn(*s, dtype=torch.bfloat16) * 0.05)(F, D)),
        }
    _B_in = _B_setup()

    return {
        "A_u": _A_in["u"],
        "A_A_re": _A_in["A_re"],
        "A_A_im": _A_in["A_im"],
        "A_B_re": _A_in["B_re"],
        "A_B_im": _A_in["B_im"],
        "A_C_re": _A_in["C_re"],
        "A_C_im": _A_in["C_im"],
        "A_log_dt": _A_in["log_dt"],
        "A_Dskip": _A_in["Dskip"],
        "B_x": _B_in["x"],
        "B_w_gate": _B_in["w_gate"],
        "B_w_up": _B_in["w_up"],
        "B_w_down": _B_in["w_down"],
    }

def reference(A_u, A_A_re, A_A_im, A_B_re, A_B_im, A_C_re, A_C_im, A_log_dt, A_Dskip, B_x, B_w_gate, B_w_up, B_w_down):
    def _A_ref(u, A_re, A_im, B_re, B_im, C_re, C_im, log_dt, Dskip):
        Bsz, L, D = u.shape
        dt = torch.exp(log_dt)[:, None]
        A = A_re + 1j * A_im
        Bc = B_re + 1j * B_im
        Cc = C_re + 1j * C_im
        logdA = dt * A
        dB = dt * Bc
        l = (lambda x, dt: x.to(dt))(torch.arange(L), A_re.dtype)
        P = torch.exp(logdA[:, :, None] * l[None, None, :])
        K = torch.einsum("dn,dnl,dn->dl", Cc, P, dB).real
        L2 = 2 * L
        Kp = _pad(K, ((0, 0), (0, L)))
        up = (lambda x, *d: x.permute(*d))(u, 0, 2, 1)
        up = _pad(up, ((0, 0), (0, 0), (0, L)))
        Kf = (lambda x, axes=(-2,-1): torch.fft.rfft2(x.float(), dim=axes))(Kp[:, None, :], axes=(-2, -1))
        Uf = (lambda x, axes=(-2,-1): torch.fft.rfft2(x.float(), dim=axes))(up[:, :, None, :], axes=(-2, -1))
        Yf = Uf * Kf[None, :, :, :]
        y = (lambda x, s, axes=(-2,-1): torch.fft.irfft2(x, s=s, dim=axes).to(torch.bfloat16))(Yf, (1, L2), axes=(-2, -1))[:, :, 0, :L]
        y = (lambda x, *d: x.permute(*d))(y, 0, 2, 1) + u * Dskip[None, None, :]
        return y

    def _B_ref(x, w_gate, w_up, w_down):
        g = torch.einsum("bsd,df->bsf", x, w_gate)
        u = torch.einsum("bsd,df->bsf", x, w_up)
        h = _sigmoid(g) * u
        return torch.einsum("bsf,fd->bsd", h, w_down)

    x = A_u
    xn = _layernorm(x, axis=-1)
    return x + _A_ref(xn, A_A_re, A_A_im, A_B_re, A_B_im, A_C_re, A_C_im, A_log_dt, A_Dskip) + _B_ref(xn, B_w_gate, B_w_up, B_w_down)
```

```python
import sys, re
src, which, out = sys.argv[1:4]
s = open(src).read()
names = [l for l in s.split("\n") if "; STAMPS" in l][0].split()[2:]
KN = "parallel_sum__ssm_conv_s4__glu_gated_glu__prompt_kernel"
s = re.sub(r"; @launch grid=\(256,1,1\) block=\(512,1,1\) lds=(\d+)", rf"; @launch kernel={KN} grid=(256,1,1) block=(512,1,1) lds=\1\n; @launch kernel=rep_kernel grid=(1,1,1) block=(64,1,1) lds=0", s)
if which == "zero": body = "s_mov_b32 s20, 0\n"
else:
    body = """
    v_lshlrev_b32 v1, 11, v0
    v_add_u32 v1, 0xC00000, v1
"""
    if which in ("spread", "rtend"):
        for k in range(4):
            body += f"    buffer_load_dword v{4+k}, v1, s[8:11], 0 offen offset:252\n    v_add_u32 v1, 0x20000, v1\n"
        body += "    s_waitcnt vmcnt(0)\n    v_max_u32 v8, v4, v5\n    v_max3_u32 v8, v8, v6, v7\n    v_min_u32 v9, v4, v5\n    v_min3_u32 v9, v9, v6, v7\n    s_mov_b32 s20, 0\n    s_mov_b32 s21, -1\n    s_nop 1\n"
        for l in range(64):
            body += f"    v_readlane_b32 s22, v8, {l}\n    v_readlane_b32 s23, v9, {l}\n    s_max_u32 s20, s20, s22\n    s_min_u32 s21, s21, s23\n"
        if which == "spread": body += "    s_sub_u32 s20, s20, s21\n    s_mul_i32 s20, s20, 24\n"
        else: body += "    s_sub_u32 s20, s26, s21\n    s_mul_i32 s20, s20, 24\n"
    else:
        i = names.index(which)
        body += "    v_add_u32 v1, 0x20000, v1\n"
        for k in range(3):
            body += f"    buffer_load_dword v{4+k}, v1, s[8:11], 0 offen\n    buffer_load_dword v{8+k}, v1, s[8:11], 0 offen offset:{4*i}\n    v_add_u32 v1, 0x20000, v1\n"
        body += "    s_waitcnt vmcnt(0)\n    v_sub_u32 v8, v8, v4\n    v_sub_u32 v9, v9, v5\n    v_sub_u32 v10, v10, v6\n    v_add3_u32 v8, v8, v9, v10\n    s_mov_b32 s20, 0\n    s_nop 1\n"
        for l in range(64):
            body += f"    v_readlane_b32 s22, v8, {l}\n    s_add_u32 s20, s20, s22\n"
        body += "    s_mul_hi_u32 s20, s20, 22369621\n"
rep = f"""
.text
.globl rep_kernel
.p2align 8
.type rep_kernel,@function
rep_kernel:
    s_memrealtime s[26:27]
    s_load_dwordx2 s[4:5], s[0:1], 120
    s_cmp_lg_u32 s2, 0
    s_cbranch_scc1 L_rep_end
    s_waitcnt lgkmcnt(0)
    s_mov_b32 s8, s4
    s_mov_b32 s9, s5
    s_mov_b32 s10, 0x1000000
    s_mov_b32 s11, 0x20000
{body}
    s_min_u32 s20, s20, 200000
    s_lshr_b32 s20, s20, 1
    s_memrealtime s[12:13]
    s_waitcnt lgkmcnt(0)
L_rep_spin:
    s_memrealtime s[14:15]
    s_waitcnt lgkmcnt(0)
    s_sub_u32 s14, s14, s12
    s_cmp_lt_u32 s14, s20
    s_cbranch_scc1 L_rep_spin
L_rep_end:
    s_endpgm
"""
i = s.index('.section .rodata')
s = s[:i] + rep + s[i:] + """.p2align 6
.amdhsa_kernel rep_kernel
  .amdhsa_next_free_vgpr 32
  .amdhsa_next_free_sgpr 40
  .amdhsa_accum_offset 32
  .amdhsa_group_segment_fixed_size 0
  .amdhsa_kernarg_size 128
  .amdhsa_user_sgpr_count 2
  .amdhsa_user_sgpr_kernarg_segment_ptr 1
  .amdhsa_system_sgpr_workgroup_id_x 1
.end_amdhsa_kernel
"""
open(out, "w").write(s)
```

```python
import sys, re
src, which, mode, out = sys.argv[1:5]
s = open(src).read()
names = [l for l in s.split("\n") if "; STAMPS" in l][0].split()[2:]
KN = "parallel_sum__ssm_conv_s4__glu_gated_glu__prompt_kernel"
s = re.sub(r"; @launch grid=\(256,1,1\) block=\(512,1,1\) lds=(\d+)", rf"; @launch kernel={KN} grid=(256,1,1) block=(512,1,1) lds=\1\n; @launch kernel=rep_kernel grid=(1,1,1) block=(64,1,1) lds=0", s)
i = {"end": 62, "start": 63}.get(which) or names.index(which)
body = "    v_lshlrev_b32 v1, 11, v0\n    v_add_u32 v1, 0xE20000, v1\n"
for k in range(3):
    body += f"    buffer_load_dword v{4+k}, v1, s[8:11], 0 offen offset:252\n    buffer_load_dword v{8+k}, v1, s[8:11], 0 offen offset:{7*256+4*i}\n    v_add_u32 v1, 0x20000, v1\n"
body += "    s_waitcnt vmcnt(0)\n    v_min3_u32 v4, v4, v5, v6\n    s_mov_b32 s21, -1\n    s_nop 1\n"
for l in range(64): body += f"    v_readlane_b32 s23, v4, {l}\n    s_min_u32 s21, s21, s23\n"
body += "    v_subrev_u32 v8, s21, v8\n    v_subrev_u32 v9, s21, v9\n    v_subrev_u32 v10, s21, v10\n"
body += ("    v_max3_u32 v8, v8, v9, v10\n" if mode == "max" else "    v_add3_u32 v8, v8, v9, v10\n") + "    s_mov_b32 s20, 0\n    s_nop 1\n"
for l in range(64): body += f"    v_readlane_b32 s22, v8, {l}\n    s_{'max' if mode == 'max' else 'add'}_u32 s20, s20, s22\n"
body += "    s_mul_i32 s20, s20, 20\n"
if mode != "max": body += "    s_mul_hi_u32 s20, s20, 22369621\n"
if mode == "zero": body += "    s_mov_b32 s20, 0\n"
rep = f"""
.text
.globl rep_kernel
.p2align 8
.type rep_kernel,@function
rep_kernel:
    s_load_dwordx2 s[4:5], s[0:1], 120
    s_cmp_lg_u32 s2, 0
    s_cbranch_scc1 L_rep_end
    s_waitcnt lgkmcnt(0)
    s_mov_b32 s8, s4
    s_mov_b32 s9, s5
    s_mov_b32 s10, 0x1000000
    s_mov_b32 s11, 0x20000
{body}
    s_min_u32 s20, s20, 100000
    s_memrealtime s[12:13]
    s_waitcnt lgkmcnt(0)
L_rep_spin:
    s_memrealtime s[14:15]
    s_waitcnt lgkmcnt(0)
    s_sub_u32 s14, s14, s12
    s_cmp_lt_u32 s14, s20
    s_cbranch_scc1 L_rep_spin
L_rep_end:
    s_endpgm
"""
k = s.index('.section .rodata')
s = s[:k] + rep + s[k:] + """.p2align 6
.amdhsa_kernel rep_kernel
  .amdhsa_next_free_vgpr 32
  .amdhsa_next_free_sgpr 40
  .amdhsa_accum_offset 32
  .amdhsa_group_segment_fixed_size 0
  .amdhsa_kernarg_size 128
  .amdhsa_user_sgpr_count 2
  .amdhsa_user_sgpr_kernarg_segment_ptr 1
  .amdhsa_system_sgpr_workgroup_id_x 1
.end_amdhsa_kernel
"""
open(out, "w").write(s)
```

```python
import sys, re
src, which, mode, out = sys.argv[1:5]
s = open(src).read()
names = [l for l in s.split("\n") if "; STAMPS" in l][0].split()[2:]
KN = "parallel_sum__ssm_conv_s4__glu_gated_glu__prompt_kernel"
s = re.sub(r"; @launch grid=\(256,1,1\) block=\(512,1,1\) lds=(\d+)", rf"; @launch kernel={KN} grid=(256,1,1) block=(512,1,1) lds=\1\n; @launch kernel=rep_kernel grid=(1,1,1) block=(64,1,1) lds=0", s)
HELP = which.startswith("H")
i = {"end": 62, "start": 63, "Hend": 62, "Hagg": 62}.get(which) or names.index(which)
body = "    v_lshlrev_b32 v1, 11, v0\n    v_add_u32 v1, 0xE20000, v1\n"
for k in range(3):
    body += f"    buffer_load_dword v{4+k}, v1, s[8:11], 0 offen offset:252\n    buffer_load_dword v{8+k}, v1, s[8:11], 0 offen offset:{7*256+4*i}\n    v_add_u32 v1, 0x20000, v1\n"
if HELP:
    body += "    s_waitcnt vmcnt(0)\n" + ("    v_min_u32 v1, 23, v0\n" if which == "Hend" else "    v_and_b32 v1, 7, v0\n    v_add_u32 v1, 24, v1\n") + "    v_lshlrev_b32 v1, 11, v1\n    v_add_u32 v1, 0xE00000, v1\n"
    for k in range(3): body += f"    buffer_load_dword v{8+k}, v1, s[8:11], 0 offen offset:{(7*256 if which == 'Hend' else 0)+4*i}\n"
body += "    s_waitcnt vmcnt(0)\n    v_min3_u32 v4, v4, v5, v6\n    s_mov_b32 s21, -1\n    s_nop 1\n"
for l in range(64): body += f"    v_readlane_b32 s23, v4, {l}\n    s_min_u32 s21, s21, s23\n"
body += "    v_subrev_u32 v8, s21, v8\n    v_subrev_u32 v9, s21, v9\n    v_subrev_u32 v10, s21, v10\n"
body += ("    v_max3_u32 v8, v8, v9, v10\n" if mode == "max" else "    v_add3_u32 v8, v8, v9, v10\n") + "    s_mov_b32 s20, 0\n    s_nop 1\n"
for l in range(64): body += f"    v_readlane_b32 s22, v8, {l}\n    s_{'max' if mode == 'max' else 'add'}_u32 s20, s20, s22\n"
body += "    s_mul_i32 s20, s20, 20\n"
if mode != "max": body += "    s_mul_hi_u32 s20, s20, 22369621\n"
if mode == "zero": body += "    s_mov_b32 s20, 0\n"
rep = f"""
.text
.globl rep_kernel
.p2align 8
.type rep_kernel,@function
rep_kernel:
    s_load_dwordx2 s[4:5], s[0:1], 120
    s_cmp_lg_u32 s2, 0
    s_cbranch_scc1 L_rep_end
    s_waitcnt lgkmcnt(0)
    s_mov_b32 s8, s4
    s_mov_b32 s9, s5
    s_mov_b32 s10, 0x1000000
    s_mov_b32 s11, 0x20000
{body}
    s_min_u32 s20, s20, 100000
    s_memrealtime s[12:13]
    s_waitcnt lgkmcnt(0)
L_rep_spin:
    s_memrealtime s[14:15]
    s_waitcnt lgkmcnt(0)
    s_sub_u32 s14, s14, s12
    s_cmp_lt_u32 s14, s20
    s_cbranch_scc1 L_rep_spin
L_rep_end:
    s_endpgm
"""
k = s.index('.section .rodata')
s = s[:k] + rep + s[k:] + """.p2align 6
.amdhsa_kernel rep_kernel
  .amdhsa_next_free_vgpr 32
  .amdhsa_next_free_sgpr 40
  .amdhsa_accum_offset 32
  .amdhsa_group_segment_fixed_size 0
  .amdhsa_kernarg_size 128
  .amdhsa_user_sgpr_count 2
  .amdhsa_user_sgpr_kernarg_segment_ptr 1
  .amdhsa_system_sgpr_workgroup_id_x 1
.end_amdhsa_kernel
"""
open(out, "w").write(s)
```
